```python
import torch

def _softmax(x, axis=-1):
    return torch.softmax(x, dim=axis)
def _gelu(x):
    return torch.nn.functional.gelu(x, approximate="tanh")
def _silu(x):
    return torch.nn.functional.silu(x)
def _sigmoid(x):
    return torch.sigmoid(x)
def _layernorm(x, axis=-1, eps=1e-5):
    m = x.mean(dim=axis, keepdim=True)
    v = x.var(dim=axis, keepdim=True, unbiased=False)
    return (x - m) / torch.sqrt(v + eps)
def _scatter_add(tgt, idx, src, axis=0):
    return tgt.clone().index_add_(axis, idx, src)
def _segment_sum(src, seg, n):
    out = torch.zeros((n,) + src.shape[1:], dtype=src.dtype)
    return out.index_add_(0, seg, src)
def _pad(x, pw):
    flat = tuple(v for pair in reversed(pw) for v in pair)
    return torch.nn.functional.pad(x, flat)

kernel_name = 'sequential_preLN__gqa_block_cached__geglu_ffn__decode'

def setup_inputs():

    _w = (lambda a: (lambda t: t.to(torch.bfloat16) if t.is_floating_point() else t)(torch.as_tensor(a)))
    def _A_setup():
        B, Sq, D = 4, 1, 512
        Hq, Hkv, Sk, Dh = 32, 32, 8192, 128
        assert Hq % Hkv == 0, (Hq, Hkv)
        return {
            "x": _w((lambda *s: torch.randn(*s, dtype=torch.bfloat16) * 0.05)(B, Sq, D)),
            "k_cache": _w((lambda *s: torch.randn(*s, dtype=torch.bfloat16) * 3.2)(B, Hkv, Sk, Dh)),
            "v_cache": _w((lambda *s: torch.randn(*s, dtype=torch.bfloat16) * 0.4)(B, Hkv, Sk, Dh)),
            "wq": _w((lambda *s: torch.randn(*s, dtype=torch.bfloat16) * 3.2)(D, Hq * Dh) * (D ** -0.5)),
            "wo": _w((lambda *s: torch.randn(*s, dtype=torch.bfloat16) * 0.4)(Hq * Dh, D) * ((Hq * Dh) ** -0.5)),
        }
    _A_in = _A_setup()

    def _B_setup():
        B, S, D, F = 4, 1, 512, 1376
        return {
            "x": _w((lambda *s: torch.randn(*s, dtype=torch.bfloat16) * 0.05)(B, S, D)),
            "w_gate": _w((lambda *s: torch.randn(*s, dtype=torch.bfloat16) * 0.05)(D, F)),
            "w_up": _w((lambda *s: torch.randn(*s, dtype=torch.bfloat16) * 0.05)(D, F)),
            "w_down": _w((lambda *s: torch.randn(*s, dtype=torch.bfloat16) * 0.05)(F, D)),
        }
    _B_in = _B_setup()

    return {
        "A_x": _A_in["x"],
        "A_k_cache": _A_in["k_cache"],
        "A_v_cache": _A_in["v_cache"],
        "A_wq": _A_in["wq"],
        "A_wo": _A_in["wo"],
        "B_x": _B_in["x"],
        "B_w_gate": _B_in["w_gate"],
        "B_w_up": _B_in["w_up"],
        "B_w_down": _B_in["w_down"],
    }

def reference(A_x, A_k_cache, A_v_cache, A_wq, A_wo, B_x, B_w_gate, B_w_up, B_w_down):
    def _A_ref(x, k_cache, v_cache, wq, wo):
        B, Sq, D = x.shape
        Hq, Dh = 32, 128
        Hkv = k_cache.shape[1]
        rep = Hq // Hkv
        q = (lambda x, *d: x.permute(*d))((x @ wq).reshape(B, Sq, Hq, Dh), 0, 2, 1, 3)
        k = (lambda x, n, axis: torch.repeat_interleave(x, n, dim=axis))(k_cache, rep, axis=1)
        v = (lambda x, n, axis: torch.repeat_interleave(x, n, dim=axis))(v_cache, rep, axis=1)
        scores = torch.einsum("bhqd,bhkd->bhqk", q, k) * (Dh ** -0.5)
        p = _softmax(scores, axis=-1)
        o = torch.einsum("bhqk,bhkd->bhqd", p, v)
        return (lambda x, *d: x.permute(*d))(o, 0, 2, 1, 3).reshape(B, Sq, Hq * Dh) @ wo

    def _B_ref(x, w_gate, w_up, w_down):
        return (_gelu(x @ w_gate) * (x @ w_up)) @ w_down

    x = A_x
    h = x + _A_ref(_layernorm(x, axis=-1), A_k_cache, A_v_cache, A_wq, A_wo)
    h2 = h + _B_ref(_layernorm(h, axis=-1), B_w_gate, B_w_up, B_w_down)
    return h2
```

```python
import re

TRANS = ('v_exp_f32', 'v_log_f32', 'v_rcp_f32', 'v_rsq_f32', 'v_sqrt_f32', 'v_sin_f32', 'v_cos_f32', 'v_rcp_iflag_f32')

def expand(tok):
    tok = tok.strip()
    neg = tok.lstrip('-')
    if neg.startswith('abs(') and neg.endswith(')'):
        neg = neg[4:-1]
    if neg.startswith('|') and neg.endswith('|'):
        neg = neg[1:-1]
    m = re.fullmatch(r'([vsa])(\d+)', neg)
    if m: return {(m.group(1), int(m.group(2)))}
    m = re.fullmatch(r'([vsa])\[(\d+):(\d+)\]', neg)
    if m: return {(m.group(1), i) for i in range(int(m.group(2)), int(m.group(3)) + 1)}
    if neg == 'vcc': return {('s', 'vcc_lo'), ('s', 'vcc_hi')}
    if neg in ('vcc_lo', 'vcc_hi'): return {('s', neg)}
    if neg == 'exec': return {('x', 'exec')}
    if neg in ('exec_lo', 'exec_hi'): return {('x', 'exec')}
    if neg == 'm0': return {('s', 'm0')}
    return set()

class Ins:
    def __init__(self, text):
        self.text = text
        t = text.split(';')[0].strip()
        self.op = t.split()[0] if t else ''
        rest = t[len(self.op):].strip()
        ops, depth, cur = [], 0, ''
        for ch in rest:
            if ch in '[(': depth += 1
            if ch in '])': depth -= 1
            if ch == ',' and depth == 0:
                ops.append(cur.strip()); cur = ''
            else: cur += ch
        if cur.strip(): ops.append(cur.strip())
        self.mods = ''
        if ops:
            parts = ops[-1].split(None, 1)
            ops[-1] = parts[0]
            if len(parts) > 1: self.mods = parts[1]
        self.ops = ops
        op = self.op
        self.kind = ('valu' if op.startswith('v_') else 'salu' if op.startswith('s_') else
                     'vmem' if op.startswith(('buffer_', 'global_', 'flat_')) else 'ds' if op.startswith('ds_') else 'other')
        self.mfma = op.startswith('v_mfma')
        if self.mfma: self.kind = 'mfma'
        self.trans = any(op.startswith(x) for x in TRANS)
        self.dot = op.startswith('v_dot')
        self.dpp = ('row_' in self.mods or 'quad_perm' in self.mods or op.endswith('_dpp') or 'wave_' in self.mods)
        self.permlane = op.startswith('v_permlane')
        self.readlane = op.startswith(('v_readlane', 'v_readfirstlane'))
        self.writelane = op.startswith('v_writelane')
        self.W = set(); self.R = set()
        self._rw()

    def _rw(self):
        op, ops = self.op, self.ops
        E = lambda i: expand(ops[i]) if i < len(ops) else set()
        if self.kind in ('valu', 'mfma'):
            if op.startswith('v_cmp'):
                self.W |= E(0)
                if op.startswith('v_cmpx'): self.W |= {('x', 'exec')}
                for i in range(1, len(ops)): self.R |= E(i)
            elif self.permlane and 'swap' in op:
                self.W |= E(0) | E(1); self.R |= E(0) | E(1)
            elif op.startswith(('v_add_co', 'v_sub_co', 'v_subrev_co', 'v_addc_co', 'v_subb_co', 'v_div_scale', 'v_mad_u64_u32')):
                self.W |= E(0) | E(1)
                for i in range(2, len(ops)): self.R |= E(i)
            elif op.startswith('v_nop'):
                pass
            else:
                self.W |= E(0)
                for i in range(1, len(ops)): self.R |= E(i)
                if op.startswith(('v_fmac', 'v_dot2c', 'v_mac', 'v_pk_fmac', 'v_writelane')) : self.R |= E(0)
                if self.dpp: self.R |= E(0)
                if op.startswith('v_cndmask') and len(ops) == 3: self.R |= expand('vcc')
                if op.startswith('v_div_fmas'): self.R |= expand('vcc')
        elif self.kind == 'salu':
            if op.startswith(('s_cmp', 's_cbranch', 's_branch', 's_waitcnt', 's_nop', 's_barrier', 's_endpgm', 's_sleep', 's_setprio', 's_bitcmp')):
                for i in range(len(ops)): self.R |= E(i)
            else:
                self.W |= E(0)
                for i in range(1, len(ops)): self.R |= E(i)
                if 'saveexec' in op: self.W |= {('x', 'exec')}
        elif self.kind == 'vmem':
            is_store = 'store' in op
            is_atomic = 'atomic' in op
            if op.startswith('buffer_'):
                if op in ('buffer_wbl2', 'buffer_inv'): return
                if is_store or is_atomic:
                    for i in range(len(ops)): self.R |= E(i)
                    self.sdata = E(0)
                    if is_atomic and 'sc0' in self.mods: self.W |= E(0)
                else:
                    if 'lds' in self.mods.split():
                        for i in range(len(ops)): self.R |= E(i)
                    else:
                        self.W |= E(0)
                        for i in range(1, len(ops)): self.R |= E(i)
                        if 'd16' in op: self.R |= E(0)
            else:
                if is_store:
                    for i in range(len(ops)): self.R |= E(i)
                    self.sdata = E(1)
                elif is_atomic:
                    if 'sc0' in self.mods:
                        self.W |= E(0)
                        for i in range(1, len(ops)): self.R |= E(i)
                    else:
                        for i in range(len(ops)): self.R |= E(i)
                else:
                    self.W |= E(0)
                    for i in range(1, len(ops)): self.R |= E(i)
        elif self.kind == 'ds':
            if op.startswith(('ds_read', 'ds_bpermute', 'ds_permute', 'ds_swizzle')) or '_rtn' in op:
                self.W |= E(0)
                for i in range(1, len(ops)): self.R |= E(i)
            else:
                for i in range(len(ops)): self.R |= E(i)

    def dpp_src(self):
        return expand(self.ops[1]) if len(self.ops) > 1 else set()

def mfma_passes(op):
    if '32x32x16' in op or '32x32x8' in op: return 8
    if '16x16x32' in op or '16x16x16' in op: return 4
    if '4x4x4' in op: return 2
    raise ValueError(op)

XDL_VALU = {2: 5, 4: 8, 8: 12, 16: 20}
XDL_SRCC_WAR = {2: 1, 4: 3, 8: 7, 16: 15}
XDL_OVERLAP_C = {2: 4, 4: 6, 8: 10, 16: 18}

def isv(s): return {r for r in s if r[0] in ('v', 'a')}
def iss(s): return {r for r in s if r[0] == 's'}

def need(prev, cur):
    n = 0
    pv = prev.kind == 'valu'
    if pv:
        wv = isv(prev.W); ws = iss(prev.W)
        if cur.kind == 'valu' and cur.dpp and (wv & cur.dpp_src()): n = max(n, 2)
        if cur.kind == 'valu' and cur.permlane and (wv & cur.R): n = max(n, 2)
        if cur.kind == 'valu' and cur.readlane and (wv & cur.R): n = max(n, 1)
        if cur.kind == 'mfma' and (wv & cur.R): n = max(n, 2)
        if ws:
            if cur.kind == 'valu' and (ws & cur.R): n = max(n, 2)
            if cur.kind == 'valu' and (cur.readlane or cur.writelane) and (ws & cur.R): n = max(n, 4)
            if cur.kind == 'vmem' and (ws & cur.R): n = max(n, 5)
            if cur.op.startswith('v_div_fmas') and (ws & expand('vcc')): n = max(n, 4)
            if cur.kind == 'salu' and (ws & cur.R): n = max(n, 1)
        if prev.trans and cur.kind in ('valu', 'mfma') and (wv & cur.R): n = max(n, 1)
        if prev.trans and cur.kind in ('vmem', 'ds') and (wv & cur.R): n = max(n, 1)
        if prev.dot:
            if cur.kind in ('valu', 'mfma', 'vmem', 'ds'):
                hitR = wv & cur.R; hitW = wv & cur.W
                if cur.dot and cur.op.replace('_dpp', '').replace('_e32', '') == prev.op.replace('_dpp', '').replace('_e32', ''):
                    if prev.op.startswith('v_dot2c'):
                        ab = set()
                        for i in (1, 2): ab |= expand(cur.ops[i])
                    else:
                        ab = set()
                        for i in (1, 2): ab |= expand(cur.ops[i])
                    if wv & ab: n = max(n, 3)
                elif hitR or hitW: n = max(n, 3)
        if ('x', 'exec') in prev.W:
            if cur.kind == 'valu' and cur.dpp: n = max(n, 5)
            if cur.kind == 'mfma': n = max(n, 4)
            if cur.kind == 'valu' and (cur.readlane or cur.writelane or cur.permlane): n = max(n, 4)
    if prev.kind == 'mfma':
        p = mfma_passes(prev.op)
        wd = isv(prev.W)
        if cur.kind == 'mfma':
            c = expand(cur.ops[3]); ab = expand(cur.ops[1]) | expand(cur.ops[2])
            if wd & ab: n = max(n, XDL_VALU[p])
            if wd & c:
                if c == wd and mfma_passes(cur.op) == p: n = max(n, 2 if p == 2 else 0)
                else: n = max(n, XDL_OVERLAP_C[p])
        elif cur.kind in ('valu', 'vmem', 'ds'):
            if wd & (cur.R | cur.W): n = max(n, XDL_VALU[p])
            csrc = expand(prev.ops[3])
            if cur.kind == 'valu' and (csrc & cur.W): n = max(n, XDL_SRCC_WAR[p])
    if prev.kind == 'vmem' and hasattr(prev, 'sdata') and len(prev.sdata) >= 3:
        if cur.kind in ('valu', 'mfma') and (prev.sdata & cur.W): n = max(n, 2)
        elif (prev.sdata & cur.W): n = max(n, 1)
    if prev.kind == 'salu' and ('s', 'm0') in prev.W:
        if cur.kind == 'vmem' and 'lds' in cur.mods.split(): n = max(n, 1)
        if cur.op.startswith('s_sendmsg') or 'addtid' in cur.op: n = max(n, 1)
    if prev.kind == 'salu' and ('x', 'exec') in prev.W:
        if cur.kind == 'valu' and (cur.dpp or cur.permlane): n = max(n, 1)
    return n

class Asm:
    def __init__(self):
        self.out = []
        self.hist = []
        self.nins = 0
        self.auto = True
    def raw(self, s):
        self.out.append(s)
    def comment(self, s):
        self.out.append('  ; ' + s)
    def label(self, name):
        self.out.append(name + ':')
    def flush_hist(self):
        self.hist = []
    def __call__(self, text):
        for line in text.split('\n'):
            line = line.strip()
            if not line: continue
            if line.startswith(';'):
                self.out.append('  ' + line); continue
            if line.endswith(':'):
                self.label(line[:-1]); continue
            self.emit(line)
    def emit(self, line):
        ins = Ins(line)
        if ins.op == 's_nop':
            k = int(ins.ops[0], 0) + 1
            self.out.append('  ' + line); self.nins += 1
            self.hist.append((None, k)); self.hist = self.hist[-40:]
            return
        if self.auto:
            dist = 0; req = 0
            for (p, k) in reversed(self.hist):
                if p is not None:
                    nd = need(p, ins)
                    if nd > dist: req = max(req, nd - dist)
                dist += k
                if dist > 24: break
            while req > 0:
                k = min(req, 16)
                self.out.append(f'  s_nop {k-1}'); self.nins += 1
                self.hist.append((None, k)); req -= k
        self.out.append('  ' + line); self.nins += 1
        self.hist.append((ins, 1)); self.hist = self.hist[-40:]
    def text(self):
        return '\n'.join(self.out) + '\n'
```

```python
from asmlib import Asm
KN = 'sequential_preLN__gqa_block_cached__geglu_ffn__decode'

def header(launch_lines):
    h = []
    for l in launch_lines: h.append(l)
    h.append('.amdgcn_target "amdgcn-amd-amdhsa--gfx950"')
    h.append('.text')
    return '\n'.join(h) + '\n'

def kstart(name):
    return f'.globl {name}\n.p2align 8\n.type {name},@function\n{name}:\n'

def kdesc(name, vgpr, sgpr=102, accum=None):
    if accum is None: accum = (vgpr + 3) // 4 * 4
    return f'''.section .rodata,"a"
.p2align 6
.amdhsa_kernel {name}
  .amdhsa_next_free_vgpr {vgpr}
  .amdhsa_next_free_sgpr {sgpr}
  .amdhsa_accum_offset {accum}
  .amdhsa_group_segment_fixed_size 0
  .amdhsa_kernarg_size 96
  .amdhsa_user_sgpr_count 2
  .amdhsa_user_sgpr_kernarg_segment_ptr 1
  .amdhsa_system_sgpr_workgroup_id_x 1
  .amdhsa_float_denorm_mode_32 3
  .amdhsa_float_denorm_mode_16_64 3
.end_amdhsa_kernel
'''
```

```python
from common import *

LOG2E = 1.4426950408889634
import struct
def f2u(x): return struct.unpack('<I', struct.pack('<f', x))[0]
def hx(x): return '0x%08x' % f2u(x)

QPART = 0
QBF   = 4096
SC    = 6144
PP    = SC + 16384
MX    = PP + 32768
LS    = MX + 32
CN    = LS + 32
OPART = CN + 64
LDS_K1 = OPART + 4096

WS_ACC = 0
WS_ML  = 8192
WS_ACT = 16384
WS_DBG = 65536

S_W = 3
X_, K_, V_, WQ_, WO_, BX_, WG_, WU_, WD_, OUT_, DBG_, WS_ = 16, 18, 20, 22, 24, 26, 28, 30, 32, 34, 36, 38
PF = 40; SW = 44; SX = 48; SWS = 52; SDBG = 56
S_H, S_B, S_HALF, S_BASE, S_OFF, S_IT = 60, 61, 62, 63, 64, 65
M1 = 66
M0 = 68
S_T = 70
S_WG = 80
V_TID, V_SOFF, V_LANE, V_T3 = 0, 1, 2, 3
VQ = 4
ACC = 8
PLO, PHI, VM, VL = 16, 17, 18, 19
PART = 20
T = 36
RING = 64
WR = 128

def srd(a, dst, ptr, size, add=None):
    if add is None:
        a(f's_mov_b32 s{dst}, s{ptr}')
        a(f's_mov_b32 s{dst+1}, s{ptr+1}')
    else:
        a(f's_add_u32 s{dst}, s{ptr}, {add}')
        a(f's_addc_u32 s{dst+1}, s{ptr+1}, 0')
    a(f's_mov_b32 s{dst+2}, {size}')
    a(f's_mov_b32 s{dst+3}, 0x20000')

def allreduce(a, op, r, t):
    for n in (8, 4, 2, 1):
        a(f'{op}_dpp v{r}, v{r}, v{r} row_ror:{n} row_mask:0xf bank_mask:0xf')
    a(f'v_mov_b32 v{t}, v{r}')
    a(f'v_permlane16_swap_b32 v{r}, v{t}')
    a(f'{op} v{r}, v{r}, v{t}')
    a(f'v_mov_b32 v{t}, v{r}')
    a(f'v_permlane32_swap_b32 v{r}, v{t}')
    a(f'{op} v{r}, v{r}, v{t}')

def bf16r(a, dst, src):
    a(f'v_cvt_pk_bf16_f32 v{dst}, v{src}, v{src}')
    a(f'v_lshlrev_b32 v{dst}, 16, v{dst}')

def divf(a, dst, num, den, t0, t1, t2):
    a(f'v_rcp_f32 v{t0}, v{den}')
    a(f'v_mul_f32 v{t1}, v{num}, v{t0}')
    a(f'v_fma_f32 v{t2}, -v{t1}, v{den}, v{num}')
    a(f'v_fma_f32 v{dst}, v{t2}, v{t0}, v{t1}')

def ln_stats(a, xs, tmean, tden, t0, t1, t2):
    a(f'v_add_f32 v{t0}, v{xs[0]}, v{xs[1]}')
    a(f'v_add_f32 v{t1}, v{xs[2]}, v{xs[3]}')
    a(f'v_add_f32 v{t2}, v{xs[4]}, v{xs[5]}')
    a(f'v_add_f32 v{tmean}, v{xs[6]}, v{xs[7]}')
    a(f'v_add_f32 v{t0}, v{t0}, v{t1}')
    a(f'v_add_f32 v{t2}, v{t2}, v{tmean}')
    a(f'v_add_f32 v{tmean}, v{t0}, v{t2}')
    allreduce(a, 'v_add_f32', tmean, t0)
    a(f'v_mul_f32 v{tmean}, {hx(1.0/512)}, v{tmean}')
    a(f'v_sub_f32 v{t0}, v{xs[0]}, v{tmean}')
    a(f'v_mul_f32 v{tden}, v{t0}, v{t0}')
    for i in range(1, 8):
        a(f'v_sub_f32 v{t0}, v{xs[i]}, v{tmean}')
        a(f'v_fmac_f32 v{tden}, v{t0}, v{t0}')
    allreduce(a, 'v_add_f32', tden, t0)
    a(f'v_mul_f32 v{tden}, {hx(1.0/512)}, v{tden}')
    bf16r(a, tden, tden)
    a(f'v_add_f32 v{tden}, {hx(1e-5)}, v{tden}')
    bf16r(a, tden, tden)
    a(f'v_sqrt_f32 v{tden}, v{tden}')
    bf16r(a, tden, tden)
    bf16r(a, tmean, tmean)

def unpack8(a, src, dst):
    for j in range(4):
        a(f'v_lshlrev_b32 v{dst+2*j}, 16, v{src+j}')
        a(f'v_and_b32 v{dst+2*j+1}, 0xffff0000, v{src+j}')

def reduce_g8(a, acc):
    for e in range(4):
        a(f'v_permlane32_swap_b32 v{acc+e}, v{acc+e+4}')
    for e in range(4):
        a(f'v_add_f32 v{acc+e}, v{acc+e}, v{acc+e+4}')
    a(f'v_permlane16_swap_b32 v{acc}, v{acc+2}')
    a(f'v_permlane16_swap_b32 v{acc+1}, v{acc+3}')
    a(f'v_add_f32 v{acc}, v{acc}, v{acc+2}')
    a(f'v_add_f32 v{acc+1}, v{acc+1}, v{acc+3}')

def gen_k1(a, fused=False, flags='nt', dbg=False):
    NB = 16
    a('s_cmp_ge_u32 s2, 256')
    a('s_cbranch_scc1 L_k1_end')
    a('s_load_dwordx16 s[16:31], s[0:1], 0')
    a('s_load_dwordx8 s[32:39], s[0:1], 64')
    a(f's_mov_b32 s{S_WG}, s2')
    a(f'v_lshrrev_b32 v{V_T3}, 6, v0')
    a(f'v_and_b32 v{V_LANE}, 63, v0')
    a(f'v_readfirstlane_b32 s{S_W}, v{V_T3}')
    a(f's_and_b32 s{S_T}, s2, 7')
    a(f's_lshr_b32 s{S_T+1}, s2, 3')
    a(f's_and_b32 s{S_T+1}, s{S_T+1}, 3')
    a(f's_lshl_b32 s{S_H}, s{S_T}, 2')
    a(f's_add_u32 s{S_H}, s{S_H}, s{S_T+1}')
    a(f's_lshr_b32 s{S_T}, s2, 5')
    a(f's_lshr_b32 s{S_B}, s{S_T}, 1')
    a(f's_and_b32 s{S_HALF}, s{S_T}, 1')
    a(f's_mov_b32 s{M1}, 0xcccccccc\ns_mov_b32 s{M1+1}, 0xcccccccc')
    a(f's_mov_b32 s{M0}, 0xaaaaaaaa\ns_mov_b32 s{M0+1}, 0xaaaaaaaa')
    a(f's_lshl_b32 s{S_BASE}, s{S_B}, 5')
    a(f's_add_u32 s{S_BASE}, s{S_BASE}, s{S_H}')
    a(f's_lshl_b32 s{S_BASE}, s{S_BASE}, 1')
    a(f's_add_u32 s{S_BASE}, s{S_BASE}, s{S_HALF}')
    a(f's_lshl_b32 s{S_BASE}, s{S_BASE}, 20')
    G, C = T, T + 1
    a(f'v_lshrrev_b32 v{G}, 4, v{V_LANE}')
    a(f'v_and_b32 v{C}, 15, v{V_LANE}')
    a(f'v_lshlrev_b32 v{V_SOFF}, 4, v0')
    a('s_waitcnt lgkmcnt(0)')
    a(f's_lshl_b32 s{S_T}, s{S_B}, 10')
    srd(a, SX, X_, 1024, f's{S_T}')
    a(f's_lshl_b32 s{S_T}, s{S_H}, 8')
    srd(a, SW, WQ_, 4 << 20, f's{S_T}')
    a(f's_sub_u32 s{SW+2}, s{SW+2}, s{S_T}')
    srd(a, PF, K_, 256 << 20)
    srd(a, SWS, WS_, 1 << 20)
    srd(a, SDBG, DBG_, 256)
    XR = T + 4
    XE = T + 8
    a(f'v_lshlrev_b32 v{T+2}, 4, v{V_LANE}')
    a(f'buffer_load_dwordx4 v[{XR}:{XR+3}], v{T+2}, s[{SX}:{SX+3}], 0 offen')
    a(f'v_lshl_add_u32 v{T+3}, v{C}, 2, v{G}')
    a(f's_lshl_b32 s{S_T}, s{S_W}, 7')
    a(f'v_lshlrev_b32 v{T+3}, 1, v{T+3}')
    a(f'buffer_load_ushort v{XE}, v{T+3}, s[{SX}:{SX+3}], s{S_T} offen')
    WV = T + 2
    a(f'v_lshlrev_b32 v{WV}, 13, v{G}')
    a(f'v_lshl_add_u32 v{WV}, v{C}, 4, v{WV}')
    a(f's_lshl_b32 s{S_T}, s{S_W}, 19')
    for t in range(16):
        a(f'buffer_load_dwordx4 v[{WR+4*t}:{WR+4*t+3}], v{WV}, s[{SW}:{SW+3}], s{S_T} offen')
        if t < 15: a(f's_add_u32 s{S_T}, s{S_T}, 32768')
    a(f's_mov_b32 s{S_OFF}, s{S_BASE}')
    def issue(i):
        a(f'buffer_load_dwordx4 v[{RING+4*i}:{RING+4*i+3}], v{V_SOFF}, s[{PF}:{PF+3}], s{S_OFF} offen {flags}')
        a(f's_add_u32 s{S_OFF}, s{S_OFF}, 8192')
    for i in range(NB): issue(i)
    a(f's_cmp_lg_u32 s{S_WG}, 0')
    a('s_cbranch_scc1 L_nozero')
    for j in range(4): a(f'v_mov_b32 v{T+12+j}, 0')
    a(f'buffer_store_dwordx4 v[{T+12}:{T+15}], v{V_SOFF}, s[{SWS}:{SWS+3}], 0 offen offset:{WS_ACC} sc1')
    a('L_nozero:')
    a(f's_waitcnt vmcnt(32)')
    XF = T + 12
    unpack8(a, XR, XF)
    MEAN, DEN = T + 20, T + 21
    ln_stats(a, list(range(XF, XF + 8)), MEAN, DEN, T + 22, T + 23, T + 24)
    a(f'v_lshlrev_b32 v{XE}, 16, v{XE}')
    a(f'v_sub_f32 v{XE}, v{XE}, v{MEAN}')
    bf16r(a, XE, XE)
    divf(a, XE, XE, DEN, T + 22, T + 23, T + 24)
    a(f'v_cvt_pk_bf16_f32 v{PLO}, v{XE}, 0')
    a(f'v_lshlrev_b32 v{PHI}, 16, v{PLO}')
    for e in range(8): a(f'v_mov_b32 v{ACC+e}, 0')
    for t in range(16):
        a(f's_waitcnt vmcnt({16 + 15 - t})')
        for e in range(8):
            p = PHI if e & 1 else PLO
            a(f'v_dot2c_f32_bf16_dpp v{ACC+e}, v{p}, v{WR+4*t+(e>>1)} row_newbcast:{t} row_mask:0xf bank_mask:0xf')
    reduce_g8(a, ACC)
    a(f'v_lshlrev_b32 v{T+2}, 5, v{C}')
    a(f'v_lshl_add_u32 v{T+2}, v{G}, 3, v{T+2}')
    a(f's_lshl_b32 s{S_T}, s{S_W}, 9')
    a(f'v_add_u32 v{T+3}, s{S_T}, v{T+2}')
    a(f'ds_write_b64 v{T+3}, v[{ACC}:{ACC+1}] offset:{QPART}')
    a(f's_lshl_b32 s{S_T}, s{S_H}, 17')
    srd(a, SW, WO_, 4 << 20, f's{S_T}')
    a(f's_sub_u32 s{SW+2}, s{SW+2}, s{S_T}')
    a(f'v_lshlrev_b32 v{WV}, 10, v{G}')
    a(f'v_lshl_add_u32 v{WV}, v{C}, 3, v{WV}')
    a(f's_lshl_b32 s{S_T}, s{S_W}, 7')
    for t in range(32):
        a(f'buffer_load_dwordx2 v[{WR+2*t}:{WR+2*t+1}], v{WV}, s[{SW}:{SW+3}], s{S_T} offen')
        if t < 31: a(f's_add_u32 s{S_T}, s{S_T}, 4096')
    a('s_waitcnt lgkmcnt(0)')
    a('s_barrier')
    a(f'v_lshlrev_b32 v{T+2}, 3, v{V_LANE}')
    for w in range(8):
        a(f'ds_read_b64 v[{PART+2*w}:{PART+2*w+1}], v{T+2} offset:{QPART + w*512}')
    a('s_waitcnt lgkmcnt(0)')
    for j in range(2):
        a(f'v_add_f32 v{PART+j}, v{PART+j}, v{PART+2+j}')
        a(f'v_add_f32 v{PART+4+j}, v{PART+4+j}, v{PART+6+j}')
        a(f'v_add_f32 v{PART+8+j}, v{PART+8+j}, v{PART+10+j}')
        a(f'v_add_f32 v{PART+12+j}, v{PART+12+j}, v{PART+14+j}')
        a(f'v_add_f32 v{PART+j}, v{PART+j}, v{PART+4+j}')
        a(f'v_add_f32 v{PART+8+j}, v{PART+8+j}, v{PART+12+j}')
        a(f'v_add_f32 v{PART+j}, v{PART+j}, v{PART+8+j}')
    a(f'v_cvt_pk_bf16_f32 v{PART}, v{PART}, v{PART+1}')
    a(f's_lshl_b32 s{S_T}, s{S_W}, 8')
    a(f'v_lshlrev_b32 v{T+2}, 2, v{V_LANE}')
    a(f'v_add_u32 v{T+2}, s{S_T}, v{T+2}')
    a(f'ds_write_b32 v{T+2}, v{PART} offset:{QBF}')
    a(f'v_lshlrev_b32 v{T+2}, 4, v{C}')
    a(f'v_add_u32 v{T+2}, s{S_T}, v{T+2}')
    a('s_waitcnt lgkmcnt(0)')
    a(f'ds_read_b128 v[{VQ}:{VQ+3}], v{T+2} offset:{QBF}')
    if dbg:
        a(f's_lshl_b32 s{S_T}, s{S_WG}, 8')
        a(f's_add_u32 s{S_T}, s{S_T}, {WS_DBG}')
        a(f'v_lshlrev_b32 v{T+4}, 2, v{V_LANE}')
        a(f'buffer_store_dword v{PART}, v{T+4}, s[{SWS}:{SWS+3}], s{S_T} offen offset:0')
    VSC, VPP = T + 5, T + 6
    a(f's_lshl_b32 s{S_T}, s{S_W}, 11')
    a(f'v_lshlrev_b32 v{VSC}, 2, v{V_LANE}')
    a(f'v_add_u32 v{VSC}, s{S_T}, v{VSC}')
    a(f's_lshl_b32 s{S_T}, s{S_W}, 12')
    a(f'v_lshlrev_b32 v{VPP}, 3, v{V_LANE}')
    a(f'v_add_u32 v{VPP}, s{S_T}, v{VPP}')
    a(f'v_mov_b32 v{VM}, 0xff800000')
    a(f's_mov_b32 s{S_IT}, 0')
    a(f's_mov_b32 s{S_T+2}, {hx(128**-0.5)}')
    a('s_waitcnt lgkmcnt(0)')
    a('L_kloop:')
    a(f's_cmp_eq_u32 s{S_IT}, 7')
    a('s_cbranch_scc0 L_k_nosw')
    a(f's_mov_b32 s{PF}, s{V_}\ns_mov_b32 s{PF+1}, s{V_+1}\ns_mov_b32 s{S_OFF}, s{S_BASE}')
    a('L_k_nosw:')
    for i in range(NB):
        a(f's_waitcnt vmcnt({NB-1})')
        b = RING + 4 * i
        a(f'v_dot2_f32_bf16 v{PART+i}, v{b}, v{VQ}, 0')
        for j in range(1, 4):
            a(f'v_dot2_f32_bf16 v{PART+i}, v{b+j}, v{VQ+j}, v{PART+i}')
        issue(i)
    P = PART
    for i in range(8):
        a(f'v_add_f32_dpp v{P+i}, v{P+i}, v{P+i} row_ror:8 row_mask:0xf bank_mask:0x3')
        a(f'v_add_f32_dpp v{P+i}, v{P+i+8}, v{P+i+8} row_ror:8 row_mask:0xf bank_mask:0xc')
    for i in range(4):
        a(f'v_add_f32_dpp v{P+i}, v{P+i}, v{P+i} row_shl:4 row_mask:0xf bank_mask:0x5')
        a(f'v_add_f32_dpp v{P+i}, v{P+i+4}, v{P+i+4} row_shr:4 row_mask:0xf bank_mask:0xa')
    for i in range(4):
        a(f'v_add_f32_dpp v{P+i}, v{P+i}, v{P+i} quad_perm:[2,3,0,1] row_mask:0xf bank_mask:0xf')
    a(f'v_cndmask_b32 v{P}, v{P}, v{P+2}, s[{M1}:{M1+1}]')
    a(f'v_cndmask_b32 v{P+1}, v{P+1}, v{P+3}, s[{M1}:{M1+1}]')
    a(f'v_add_f32_dpp v{P}, v{P}, v{P} quad_perm:[1,0,3,2] row_mask:0xf bank_mask:0xf')
    a(f'v_add_f32_dpp v{P+1}, v{P+1}, v{P+1} quad_perm:[1,0,3,2] row_mask:0xf bank_mask:0xf')
    a(f'v_cndmask_b32 v{P}, v{P}, v{P+1}, s[{M0}:{M0+1}]')
    bf16r(a, P, P)
    a(f'v_mul_f32 v{P}, s{S_T+2}, v{P}')
    bf16r(a, P, P)
    a(f'v_max_f32 v{VM}, v{VM}, v{P}')
    a(f'ds_write_b32 v{VSC}, v{P} offset:{SC}')
    a(f'v_add_u32 v{VSC}, 256, v{VSC}')
    a(f's_add_u32 s{S_IT}, s{S_IT}, 1')
    a(f's_cmp_lt_u32 s{S_IT}, 8')
    a('s_cbranch_scc1 L_kloop')
    allreduce(a, 'v_max_f32', VM, T + 8)
    a(f's_lshl_b32 s{S_T}, s{S_W}, 2')
    a(f'v_mov_b32 v{T+8}, s{S_T}')
    a(f'ds_write_b32 v{T+8}, v{VM} offset:{MX}')
    a(f'v_subrev_u32 v{VSC}, 2048, v{VSC}')
    a('s_waitcnt lgkmcnt(0)')
    a('s_barrier')
    a(f'v_mov_b32 v{T+8}, 0')
    a(f'ds_read_b128 v[{PART}:{PART+3}], v{T+8} offset:{MX}')
    a(f'ds_read_b128 v[{PART+4}:{PART+7}], v{T+8} offset:{MX+16}')
    for it in range(8):
        a(f'ds_read_b32 v{PART+8+it}, v{VSC} offset:{SC + it*256}')
    a('s_waitcnt lgkmcnt(8)')
    a(f'v_max3_f32 v{VM}, v{PART}, v{PART+1}, v{PART+2}')
    a(f'v_max3_f32 v{VM}, v{VM}, v{PART+3}, v{PART+4}')
    a(f'v_max3_f32 v{VM}, v{VM}, v{PART+5}, v{PART+6}')
    a(f'v_max_f32 v{VM}, v{VM}, v{PART+7}')
    a(f's_mov_b32 s{S_T+3}, {hx(LOG2E)}')
    a(f'v_mul_f32 v{VM}, s{S_T+3}, v{VM}')
    a(f'v_mov_b32 v{VL}, 0')
    a('s_waitcnt lgkmcnt(0)')
    for it in range(8):
        r = PART + 8 + it
        a(f'v_fma_f32 v{r}, v{r}, s{S_T+3}, -v{VM}')
        a(f'v_exp_f32 v{r}, v{r}')
        a(f'v_add_f32 v{VL}, v{VL}, v{r}')
        a(f'v_cvt_pk_bf16_f32 v{T+8}, v{r}, 0')
        a(f'v_lshlrev_b32 v{T+9}, 16, v{T+8}')
        a(f'ds_write_b64 v{VPP}, v[{T+8}:{T+9}] offset:{PP + it*512}')
    allreduce(a, 'v_add_f32', VL, T + 8)
    a(f's_lshl_b32 s{S_T}, s{S_W}, 2')
    a(f'v_mov_b32 v{T+8}, s{S_T}')
    a(f'ds_write_b32 v{T+8}, v{VL} offset:{LS}')
    a('s_waitcnt lgkmcnt(0)')
    a('s_barrier')
    a(f's_cmp_lg_u32 s{S_W}, 0')
    a('s_cbranch_scc1 L_nopub')
    a(f'v_mov_b32 v{T+8}, 0')
    a(f'ds_read_b128 v[{PART}:{PART+3}], v{T+8} offset:{LS}')
    a(f'ds_read_b128 v[{PART+4}:{PART+7}], v{T+8} offset:{LS+16}')
    a('s_waitcnt lgkmcnt(0)')
    for j in range(1, 8): a(f'v_add_f32 v{PART}, v{PART}, v{PART+j}')
    a(f'v_mov_b32 v{VL}, v{PART}')
    a(f'v_mov_b32 v{T+10}, v{VM}')
    a(f'v_mov_b32 v{T+11}, v{VL}')
    a(f's_lshl_b32 s{S_T}, s{S_WG}, 3')
    a(f's_add_u32 s{S_T}, s{S_T}, {WS_ML}')
    a(f'v_mov_b32 v{T+8}, 0')
    a(f's_mov_b64 exec, 1')
    a(f'buffer_store_dwordx2 v[{T+10}:{T+11}], v{T+8}, s[{SWS}:{SWS+3}], s{S_T} offen sc1')
    a(f's_mov_b64 exec, -1')
    a('L_nopub:')
    for e in range(8): a(f'v_mov_b32 v{ACC+e}, 0')
    a(f's_mov_b32 s{S_IT}, 0')
    a('L_vloop:')
    a(f'ds_read_b64 v[{PLO}:{PHI}], v{VPP} offset:{PP}')
    a(f'v_add_u32 v{VPP}, 512, v{VPP}')
    a(f's_cmp_eq_u32 s{S_IT}, 7')
    a('s_cbranch_scc0 L_v_nosw')
    a(f's_mov_b32 s{PF+2}, 0')
    a('L_v_nosw:')
    a(f's_cmp_lg_u32 s{S_W}, 0')
    a('s_cbranch_scc1 L_v_side_done')
    a(f's_cmp_eq_u32 s{S_IT}, 1')
    a('s_cbranch_scc1 L_side1')
    a(f's_cmp_eq_u32 s{S_IT}, 4')
    a('s_cbranch_scc1 L_side4')
    a(f's_cmp_eq_u32 s{S_IT}, 5')
    a('s_cbranch_scc1 L_side5')
    a(f's_cmp_eq_u32 s{S_IT}, 6')
    a('s_cbranch_scc1 L_side6')
    a('L_v_side_done:')
    a('s_waitcnt lgkmcnt(0)')
    for i in range(NB):
        a(f's_waitcnt vmcnt({NB-1})')
        b = RING + 4 * i
        for e in range(8):
            p = PHI if e & 1 else PLO
            a(f'v_dot2c_f32_bf16_dpp v{ACC+e}, v{p}, v{b+(e>>1)} row_newbcast:{i} row_mask:0xf bank_mask:0xf')
        issue(i)
    a(f's_add_u32 s{S_IT}, s{S_IT}, 1')
    a(f's_cmp_lt_u32 s{S_IT}, 8')
    a('s_cbranch_scc1 L_vloop')
    reduce_g8(a, ACC)
    a(f'ds_write_b64 v{T+3}, v[{ACC}:{ACC+1}] offset:{OPART}')
    a('s_waitcnt lgkmcnt(0)')
    a('s_barrier')
    a(f'v_lshl_add_u32 v{T+2}, v{C}, 2, v{G}')
    a(f'v_lshlrev_b32 v{T+2}, 2, v{T+2}')
    for w in range(8):
        a(f'ds_read_b32 v{PART+w}, v{T+2} offset:{OPART + w*512}')
        a(f'ds_read_b32 v{PART+8+w}, v{T+2} offset:{OPART + w*512 + 256}')
    a(f'v_mov_b32 v{T+8}, 0')
    a(f'ds_read_b32 v{T+9}, v{T+8} offset:{CN}')
    a('s_waitcnt lgkmcnt(0)')
    for base in (PART, PART + 8):
        a(f'v_add_f32 v{base}, v{base}, v{base+1}')
        a(f'v_add_f32 v{base+2}, v{base+2}, v{base+3}')
        a(f'v_add_f32 v{base+4}, v{base+4}, v{base+5}')
        a(f'v_add_f32 v{base+6}, v{base+6}, v{base+7}')
        a(f'v_add_f32 v{base}, v{base}, v{base+2}')
        a(f'v_add_f32 v{base+4}, v{base+4}, v{base+6}')
        a(f'v_add_f32 v{base}, v{base}, v{base+4}')
    if dbg:
        a(f's_lshl_b32 s{S_T}, s{S_WG}, 10')
        a(f's_add_u32 s{S_T}, s{S_T}, {WS_DBG + 65536}')
        a(f'v_mul_f32 v{T+10}, v{PART}, v{T+9}')
        a(f'v_mul_f32 v{T+11}, v{PART+8}, v{T+9}')
        a(f'buffer_store_dword v{T+10}, v{T+2}, s[{SWS}:{SWS+3}], s{S_T} offen offset:0')
        a(f'buffer_store_dword v{T+11}, v{T+2}, s[{SWS}:{SWS+3}], s{S_T} offen offset:256')
    PA, PB = PART + 1, PART + 9
    a(f'v_cvt_pk_bf16_f32 v{PA}, v{PART}, 0')
    a(f'v_cvt_pk_bf16_f32 v{PB}, v{PART+8}, 0')
    a(f'v_lshlrev_b32 v{PA+1}, 16, v{PA}')
    a(f'v_lshlrev_b32 v{PB+1}, 16, v{PB}')
    for e in range(4): a(f'v_mov_b32 v{ACC+e}, 0')
    for t in range(32):
        pb = PA if t < 16 else PB
        for e in range(4):
            p = pb + (e & 1)
            a(f'v_dot2c_f32_bf16_dpp v{ACC+e}, v{p}, v{WR+2*t+(e>>1)} row_newbcast:{t&15} row_mask:0xf bank_mask:0xf')
    a(f'v_permlane32_swap_b32 v{ACC}, v{ACC+2}')
    a(f'v_permlane32_swap_b32 v{ACC+1}, v{ACC+3}')
    a(f'v_add_f32 v{ACC}, v{ACC}, v{ACC+2}')
    a(f'v_add_f32 v{ACC+1}, v{ACC+1}, v{ACC+3}')
    a(f'v_permlane16_swap_b32 v{ACC}, v{ACC+1}')
    a(f'v_add_f32 v{ACC}, v{ACC}, v{ACC+1}')
    a(f'v_mul_f32 v{ACC}, v{ACC}, v{T+9}')
    a(f's_lshl_b32 s{S_T}, s{S_B}, 11')
    a(f's_lshl_b32 s{S_T+1}, s{S_W}, 8')
    a(f's_add_u32 s{S_T}, s{S_T}, s{S_T+1}')
    a(f'buffer_atomic_add_f32 v{ACC}, v{T+2}, s[{SWS}:{SWS+3}], s{S_T} offen offset:{WS_ACC}')
    a('s_waitcnt vmcnt(0)')
    a('s_endpgm')
    partner = S_T + 4
    a('L_side1:')
    a('s_waitcnt vmcnt(16)')
    a(f's_and_b32 s{S_T}, s{S_WG}, 31')
    a(f's_lshl_b32 s{S_T}, 1, s{S_T}')
    a(f'v_mov_b32 v{T+10}, s{S_T}')
    a(f's_lshr_b32 s{S_T+1}, s{S_WG}, 5')
    a(f's_lshl_b32 s{S_T+1}, s{S_T+1}, 2')
    a(f'v_mov_b32 v{T+8}, 0')
    a('s_mov_b64 exec, 1')
    a(f'buffer_atomic_or v{T+10}, v{T+8}, s[{SDBG}:{SDBG+3}], s{S_T+1} offen')
    a(f's_cmp_lg_u32 s{S_WG}, 0')
    a('s_cbranch_scc1 L_side1_b')
    a(f'v_mov_b32 v{T+11}, 1')
    a(f'buffer_atomic_or v{T+11}, v{T+8}, s[{SDBG}:{SDBG+3}], 0 offen offset:32')
    a('L_side1_b:')
    a('s_mov_b64 exec, -1')
    a('s_branch L_v_side_done')
    a('L_side4:')
    a(f's_xor_b32 s{partner}, s{S_WG}, 32')
    a(f's_lshr_b32 s{S_T+1}, s{partner}, 5')
    a(f's_lshl_b32 s{S_T+1}, s{S_T+1}, 2')
    a(f'v_mov_b32 v{T+8}, 0')
    a(f'buffer_load_dword v{T+12}, v{T+8}, s[{SDBG}:{SDBG+3}], s{S_T+1} offen sc1')
    a(f'buffer_load_dword v{T+13}, v{T+8}, s[{SDBG}:{SDBG+3}], 0 offen offset:32 sc1')
    a('s_branch L_v_side_done')
    a('L_side5:')
    a('s_waitcnt vmcnt(16)')
    a(f's_mov_b32 s{S_T+5}, 0')
    a('L_side5_chk:')
    a(f'v_readfirstlane_b32 s{S_T}, v{T+12}')
    a(f'v_readfirstlane_b32 s{S_T+6}, v{T+13}')
    a(f's_and_b32 s{S_T+7}, s{partner}, 31')
    a(f's_lshr_b32 s{S_T}, s{S_T}, s{S_T+7}')
    a(f's_and_b32 s{S_T}, s{S_T}, s{S_T+6}')
    a(f's_and_b32 s{S_T}, s{S_T}, 1')
    a('s_cbranch_scc1 L_side5_ok')
    a(f's_add_u32 s{S_T+5}, s{S_T+5}, 1')
    a(f's_cmp_gt_u32 s{S_T+5}, 0x40000')
    a('s_cbranch_scc1 L_side5_ok')
    a('s_sleep 4')
    a(f'buffer_load_dword v{T+12}, v{T+8}, s[{SDBG}:{SDBG+3}], s{S_T+1} offen sc1')
    a(f'buffer_load_dword v{T+13}, v{T+8}, s[{SDBG}:{SDBG+3}], 0 offen offset:32 sc1')
    a('s_waitcnt vmcnt(0)')
    a('s_branch L_side5_chk')
    a('L_side5_ok:')
    a(f's_lshl_b32 s{S_T}, s{partner}, 3')
    a(f's_add_u32 s{S_T}, s{S_T}, {WS_ML}')
    a(f'buffer_load_dwordx2 v[{T+12}:{T+13}], v{T+8}, s[{SWS}:{SWS+3}], s{S_T} offen sc1')
    a('s_branch L_v_side_done')
    a('L_side6:')
    a('s_waitcnt vmcnt(16)')
    a(f'v_max_f32 v{T+14}, v{VM}, v{T+12}')
    a(f'v_sub_f32 v{T+15}, v{VM}, v{T+14}')
    a(f'v_sub_f32 v{T+16}, v{T+12}, v{T+14}')
    a(f'v_exp_f32 v{T+15}, v{T+15}')
    a(f'v_exp_f32 v{T+16}, v{T+16}')
    a(f'v_mul_f32 v{T+17}, v{VL}, v{T+15}')
    a(f'v_fmac_f32 v{T+17}, v{T+13}, v{T+16}')
    divf(a, T + 18, T + 15, T + 17, T + 19, T + 20, T + 21)
    a(f'ds_write_b32 v{T+8}, v{T+18} offset:{CN}')
    a('s_branch L_v_side_done')
    a('L_k1_end:')
    a('s_endpgm')
```

```python
from common import *
from k1 import *

HN_STRIDE = 1088
L_HN = 0
L_H = 4 * HN_STRIDE
L_RED = L_H + 8192
LDS_K2 = L_RED + 4096

def gelu_act(a, g, u, t0, t1, t2):
    k0 = 0.7978845608028654
    k1 = 0.044715
    a(f'v_mul_f32 v{t0}, v{g}, v{g}')
    a(f'v_mul_f32 v{t0}, v{t0}, v{g}')
    a(f'v_mov_b32 v{t1}, {hx(k1)}')
    a(f'v_fma_f32 v{t0}, v{t0}, v{t1}, v{g}')
    a(f'v_mul_f32 v{t0}, {hx(-2.0 * k0 * LOG2E)}, v{t0}')
    a(f'v_exp_f32 v{t0}, v{t0}')
    a(f'v_add_f32 v{t0}, 1.0, v{t0}')
    divf(a, g, g, t0, t1, t2, u + 0 if False else t2 + 1)
    bf16r(a, g, g)
    a(f'v_mul_f32 v{g}, v{g}, v{u}')

def gen_k2(a):
    a('s_cmp_ge_u32 s2, 86')
    a('s_cbranch_scc1 L_k2_end')
    a('s_load_dwordx16 s[16:31], s[0:1], 0')
    a('s_load_dwordx8 s[32:39], s[0:1], 64')
    a(f'v_lshrrev_b32 v3, 6, v0')
    a(f'v_and_b32 v2, 63, v0')
    a(f'v_readfirstlane_b32 s{S_W}, v3')
    J, S = 4, 5
    a(f'v_and_b32 v{J}, 15, v2')
    a(f'v_lshrrev_b32 v{S}, 4, v2')
    a('s_waitcnt lgkmcnt(0)')
    srd(a, SWS, WS_, 1 << 20)
    srd(a, SX, X_, 4096)
    SG, SU = 40, 44
    srd(a, SG, WG_, 512 * 2752)
    srd(a, SU, WU_, 512 * 2752)
    BV = 6
    a(f's_mov_b32 s70, {8*2752}')
    a(f'v_mul_lo_u32 v{BV}, v{S}, s70')
    a(f'v_lshl_add_u32 v{BV}, v{J}, 1, v{BV}')
    a(f's_mul_i32 s71, s{S_W}, {64*2752}')
    a(f's_lshl_b32 s72, s2, 5')
    a(f's_add_u32 s71, s71, s72')
    TB = 64
    for mat, sr in ((0, SG), (1, SU)):
        a(f's_mov_b32 s72, s71')
        for tt in range(2):
            for e in range(8):
                a(f'buffer_load_ushort v{TB + mat*16 + tt*8 + e}, v{BV}, s[{sr}:{sr+3}], s72 offen')
                if not (tt == 1 and e == 7):
                    step = 2752 if e < 7 else (32 - 7) * 2752
                    a(f's_add_u32 s72, s72, {step}')
    a(f's_cmp_ge_u32 s{S_W}, 4')
    a('s_cbranch_scc1 L_k2_noln')
    A0 = 16
    XR = 24
    a(f'v_lshlrev_b32 v7, 5, v2')
    a(f's_lshl_b32 s73, s{S_W}, 11')
    a(f'buffer_load_dwordx4 v[{A0}:{A0+3}], v7, s[{SWS}:{SWS+3}], s73 offen offset:{WS_ACC}')
    a(f'buffer_load_dwordx4 v[{A0+4}:{A0+7}], v7, s[{SWS}:{SWS+3}], s73 offen offset:{WS_ACC+16}')
    a(f'v_lshlrev_b32 v8, 4, v2')
    a(f's_lshl_b32 s74, s{S_W}, 10')
    a(f'buffer_load_dwordx4 v[{XR}:{XR+3}], v8, s[{SX}:{SX+3}], s74 offen')
    a('s_waitcnt vmcnt(0)')
    XF = 28
    unpack8(a, XR, XF)
    for e in range(8):
        bf16r(a, A0 + e, A0 + e)
        a(f'v_add_f32 v{XF+e}, v{XF+e}, v{A0+e}')
        bf16r(a, XF + e, XF + e)
    a(f'v_add_u32 v9, s73, v7')
    a(f'ds_write_b128 v9, v[{XF}:{XF+3}] offset:{L_H}')
    a(f'ds_write_b128 v9, v[{XF+4}:{XF+7}] offset:{L_H+16}')
    MEAN, DEN = 36, 37
    ln_stats(a, list(range(XF, XF + 8)), MEAN, DEN, 38, 39, 40)
    for e in range(8):
        a(f'v_sub_f32 v{A0+e}, v{XF+e}, v{MEAN}')
        bf16r(a, A0 + e, A0 + e)
        divf(a, A0 + e, A0 + e, DEN, 38, 39, 40)
    for j in range(4):
        a(f'v_cvt_pk_bf16_f32 v{XR+j}, v{A0+2*j}, v{A0+2*j+1}')
    a(f's_mul_i32 s75, s{S_W}, {HN_STRIDE}')
    a(f'v_add_u32 v9, s75, v8')
    a(f'ds_write_b128 v9, v[{XR}:{XR+3}] offset:{L_HN}')
    a('L_k2_noln:')
    a('s_waitcnt vmcnt(0)')
    BF = 128
    for mat in range(2):
        for tt in range(2):
            for jj in range(4):
                lo = TB + mat*16 + tt*8 + 2*jj
                a(f'v_lshl_or_b32 v{BF + (mat*2+tt)*4 + jj}, v{lo+1}, 16, v{lo}')
    a('s_waitcnt lgkmcnt(0)')
    a('s_barrier')
    a(f'v_and_b32 v10, 3, v{J}')
    a(f's_mov_b32 s70, {HN_STRIDE}')
    a(f'v_mul_lo_u32 v10, v10, s70')
    a(f'v_lshl_add_u32 v10, v{S}, 4, v10')
    a(f's_lshl_b32 s71, s{S_W}, 7')
    a(f'v_add_u32 v10, s71, v10')
    AF = 44
    a(f'ds_read_b128 v[{AF}:{AF+3}], v10 offset:{L_HN}')
    a(f'ds_read_b128 v[{AF+4}:{AF+7}], v10 offset:{L_HN+64}')
    DG, DU = 52, 56
    for r in range(8): a(f'v_mov_b32 v{DG+r}, 0')
    a('s_waitcnt lgkmcnt(0)')
    for tt in range(2):
        a(f'v_mfma_f32_16x16x32_bf16 v[{DG}:{DG+3}], v[{AF+4*tt}:{AF+4*tt+3}], v[{BF+tt*4}:{BF+tt*4+3}], v[{DG}:{DG+3}]')
        a(f'v_mfma_f32_16x16x32_bf16 v[{DU}:{DU+3}], v[{AF+4*tt}:{AF+4*tt+3}], v[{BF+8+tt*4}:{BF+8+tt*4+3}], v[{DU}:{DU+3}]')
    a(f's_lshl_b32 s71, s{S_W}, 9')
    a(f'v_lshlrev_b32 v11, 4, v{J}')
    a(f'v_add_u32 v11, s71, v11')
    a('s_mov_b64 exec, 0xffff')
    a(f'ds_write_b128 v11, v[{DG}:{DG+3}] offset:{L_RED}')
    a(f'ds_write_b128 v11, v[{DU}:{DU+3}] offset:{L_RED+256}')
    a('s_mov_b64 exec, -1')
    a('s_waitcnt lgkmcnt(0)')
    a('s_barrier')
    a(f's_cmp_lg_u32 s{S_W}, 0')
    a('s_cbranch_scc1 L_k2_end')
    a(f'v_lshlrev_b32 v11, 4, v{J}')
    a(f'v_lshl_add_u32 v11, v{S}, 2, v11')
    for w in range(8):
        a(f'ds_read_b32 v{64+w}, v11 offset:{L_RED + w*512}')
        a(f'ds_read_b32 v{72+w}, v11 offset:{L_RED + w*512 + 256}')
    a('s_waitcnt lgkmcnt(0)')
    for base in (64, 72):
        for j in range(1, 8): a(f'v_add_f32 v{base}, v{base}, v{base+j}')
    bf16r(a, 64, 64); bf16r(a, 72, 72)
    gelu_act(a, 64, 72, 80, 81, 82)
    a(f'v_cvt_pk_bf16_f32 v64, v64, v64')
    a(f's_mov_b32 s70, 2752')
    a(f'v_mul_lo_u32 v12, v{S}, s70')
    a(f'v_lshl_add_u32 v12, v{J}, 1, v12')
    a(f's_lshl_b32 s71, s2, 5')
    a(f's_add_u32 s71, s71, {WS_ACT}')
    a(f'buffer_store_short v64, v12, s[{SWS}:{SWS+3}], s71 offen')
    a('s_waitcnt vmcnt(0)')
    a('L_k2_end:')
    a('s_endpgm')

def gen_k3(a):
    a('s_cmp_ge_u32 s2, 32')
    a('s_cbranch_scc1 L_k3_end')
    a('s_load_dwordx16 s[16:31], s[0:1], 0')
    a('s_load_dwordx8 s[32:39], s[0:1], 64')
    a(f'v_lshrrev_b32 v3, 6, v0')
    a(f'v_and_b32 v2, 63, v0')
    a(f'v_readfirstlane_b32 s{S_W}, v3')
    J, S = 4, 5
    a(f'v_and_b32 v{J}, 15, v2')
    a(f'v_lshrrev_b32 v{S}, 4, v2')
    a('s_waitcnt lgkmcnt(0)')
    srd(a, SWS, WS_, 1 << 20)
    srd(a, SX, X_, 4096)
    SD, SO = 40, 44
    srd(a, SD, WD_, 1376 * 1024)
    srd(a, SO, OUT_, 4096)
    BV = 6
    a(f'v_lshlrev_b32 v{BV}, 13, v{S}')
    a(f'v_lshl_add_u32 v{BV}, v{J}, 1, v{BV}')
    a(f's_lshl_b32 s71, s{S_W}, 15')
    a(f's_lshl_b32 s72, s2, 5')
    a(f's_add_u32 s71, s71, s72')
    TB = 64
    for m in range(6):
        for e in range(8):
            if e < 4:
                a(f'buffer_load_ushort v{TB + m*8 + e}, v{BV}, s[{SD}:{SD+3}], s71 offen offset:{e*1024}')
            else:
                if e == 4: a(f's_add_u32 s72, s71, 4096')
                a(f'buffer_load_ushort v{TB + m*8 + e}, v{BV}, s[{SD}:{SD+3}], s72 offen offset:{(e-4)*1024}')
        a(f's_add_u32 s71, s71, {8*32*1024}')
    a(f'v_and_b32 v10, 3, v{J}')
    a(f's_mov_b32 s70, 2752')
    a(f'v_mul_lo_u32 v10, v10, s70')
    a(f'v_lshl_add_u32 v10, v{S}, 4, v10')
    a(f's_lshl_b32 s71, s{S_W}, 6')
    a(f's_add_u32 s71, s71, {WS_ACT}')
    AF = 16
    for m in range(6):
        if m == 5:
            a(f's_cmp_ge_u32 s{S_W}, 3')
            a('s_cbranch_scc1 L_k3_skipA')
        a(f'buffer_load_dwordx4 v[{AF+4*m}:{AF+4*m+3}], v10, s[{SWS}:{SWS+3}], s71 offen offset:{m*512}')
    a('L_k3_skipA:')
    a(f'v_lshlrev_b32 v11, 11, v{S}')
    a(f'v_lshl_add_u32 v11, v{J}, 2, v11')
    a(f's_lshl_b32 s72, s2, 6')
    a(f'buffer_load_dword v40, v11, s[{SWS}:{SWS+3}], s72 offen offset:{WS_ACC}')
    a(f'v_lshlrev_b32 v12, 10, v{S}')
    a(f'v_lshl_add_u32 v12, v{J}, 1, v12')
    a(f's_lshl_b32 s73, s2, 5')
    a(f'buffer_load_ushort v41, v12, s[{SX}:{SX+3}], s73 offen')
    a('s_waitcnt vmcnt(0)')
    BF = 128
    for m in range(6):
        for jj in range(4):
            lo = TB + m*8 + 2*jj
            a(f'v_lshl_or_b32 v{BF + m*4 + jj}, v{lo+1}, 16, v{lo}')
    D = 44
    for r in range(4): a(f'v_mov_b32 v{D+r}, 0')
    for m in range(6):
        if m == 5:
            a(f's_cmp_ge_u32 s{S_W}, 3')
            a('s_cbranch_scc1 L_k3_skipM')
        a(f'v_mfma_f32_16x16x32_bf16 v[{D}:{D+3}], v[{AF+4*m}:{AF+4*m+3}], v[{BF+4*m}:{BF+4*m+3}], v[{D}:{D+3}]')
    a('L_k3_skipM:')
    a('s_nop 7')
    a(f's_lshl_b32 s71, s{S_W}, 8')
    a(f'v_lshlrev_b32 v13, 4, v{J}')
    a(f'v_add_u32 v13, s71, v13')
    a('s_mov_b64 exec, 0xffff')
    a(f'ds_write_b128 v13, v[{D}:{D+3}]')
    a('s_mov_b64 exec, -1')
    a('s_waitcnt lgkmcnt(0)')
    a('s_barrier')
    a(f's_cmp_lg_u32 s{S_W}, 0')
    a('s_cbranch_scc1 L_k3_end')
    a(f'v_lshlrev_b32 v13, 4, v{J}')
    a(f'v_lshl_add_u32 v13, v{S}, 2, v13')
    for w in range(8):
        a(f'ds_read_b32 v{64+w}, v13 offset:{w*256}')
    a('s_waitcnt lgkmcnt(0)')
    for j in range(1, 8): a(f'v_add_f32 v64, v64, v{64+j}')
    bf16r(a, 64, 64)
    bf16r(a, 40, 40)
    a(f'v_lshlrev_b32 v41, 16, v41')
    a(f'v_add_f32 v41, v41, v40')
    bf16r(a, 41, 41)
    a(f'v_add_f32 v64, v64, v41')
    a(f'v_cvt_pk_bf16_f32 v64, v64, v64')
    a(f'buffer_store_short v64, v12, s[{SO}:{SO+3}], s73 offen')
    a('s_waitcnt vmcnt(0)')
    a('L_k3_end:')
    a('s_endpgm')
```

```python
import sys
from common import *
import k1, k23
dbg = '--dbg' in sys.argv
names = ['attn_kernel', 'ffn1_kernel', 'ffn2_kernel']
lines = [f'; @launch kernel=attn_kernel grid=(256,1,1) block=(512,1,1) lds={k1.LDS_K1}',
         f'; @launch kernel=ffn1_kernel grid=(86,1,1) block=(512,1,1) lds={k23.LDS_K2}',
         f'; @launch kernel=ffn2_kernel grid=(32,1,1) block=(512,1,1) lds=2048']
txt = header(lines)
a = Asm(); k1.gen_k1(a, dbg=dbg); txt += kstart(names[0]) + a.text()
a = Asm(); k23.gen_k2(a); txt += kstart(names[1]) + a.text()
a = Asm(); k23.gen_k3(a); txt += kstart(names[2]) + a.text()
txt += kdesc(names[0], 192, 96) + kdesc(names[1], 144, 96) + kdesc(names[2], 152, 96)
out = sys.argv[1]
open(out, 'w').write(txt)
```
